```python
import torch

def _softmax(x, axis=-1):
    return torch.softmax(x, dim=axis)
def _gelu(x):
    return torch.nn.functional.gelu(x, approximate="tanh")
def _silu(x):
    return torch.nn.functional.silu(x)
def _sigmoid(x):
    return torch.sigmoid(x)
def _layernorm(x, axis=-1, eps=1e-5):
    m = x.mean(dim=axis, keepdim=True)
    v = x.var(dim=axis, keepdim=True, unbiased=False)
    return (x - m) / torch.sqrt(v + eps)
def _scatter_add(tgt, idx, src, axis=0):
    return tgt.clone().index_add_(axis, idx, src)
def _segment_sum(src, seg, n):
    out = torch.zeros((n,) + src.shape[1:], dtype=src.dtype)
    return out.index_add_(0, seg, src)
def _pad(x, pw):
    flat = tuple(v for pair in reversed(pw) for v in pair)
    return torch.nn.functional.pad(x, flat)

kernel_name = 'standalone__sliding_block_cached__decode'

def setup_inputs():

    _w = (lambda a: (lambda t: t.to(torch.bfloat16) if t.is_floating_point() else t)(torch.as_tensor(a)))
    B, Sq, D = 1, 1, 640
    Hq, Hkv, Sk, Dh = 32, 32, 16384, 128
    assert Hq % Hkv == 0, (Hq, Hkv)
    return {
        "x": _w((lambda *s: torch.randn(*s, dtype=torch.bfloat16) * 0.8)(B, Sq, D)),
        "k_cache": _w((lambda *s: torch.randn(*s, dtype=torch.bfloat16) * 0.8)(B, Hkv, Sk, Dh)),
        "v_cache": _w((lambda *s: torch.randn(*s, dtype=torch.bfloat16) * 0.05)(B, Hkv, Sk, Dh)),
        "wq": _w((lambda *s: torch.randn(*s, dtype=torch.bfloat16) * 0.8)(D, Hq * Dh) * (D ** -0.5)),
        "wo": _w((lambda *s: torch.randn(*s, dtype=torch.bfloat16) * 0.05)(Hq * Dh, D) * ((Hq * Dh) ** -0.5)),
    }

def reference(x, k_cache, v_cache, wq, wo):
    B, Sq, D = x.shape
    Hq, Dh = 32, 128
    Hkv, Sk = k_cache.shape[1], k_cache.shape[2]
    W = min(4096, max(256, Sk // 4))
    rep = Hq // Hkv
    q = (lambda x, *d: x.permute(*d))((x @ wq).reshape(B, Sq, Hq, Dh), 0, 2, 1, 3)
    k = (lambda x, n, axis: torch.repeat_interleave(x, n, dim=axis))(k_cache[:, :, Sk - W:, :], rep, axis=1)
    v = (lambda x, n, axis: torch.repeat_interleave(x, n, dim=axis))(v_cache[:, :, Sk - W:, :], rep, axis=1)
    scores = torch.einsum("bhqd,bhkd->bhqk", q, k) * (Dh ** -0.5)
    p = _softmax(scores, axis=-1)
    o = torch.einsum("bhqk,bhkd->bhqd", p, v)
    return (lambda x, *d: x.permute(*d))(o, 0, 2, 1, 3).reshape(B, Sq, Hq * Dh) @ wo
```

```python
import sys

HEADER = """; Kernarg layout for this problem (64 bytes, ptrs only, base s[0:1]):
; @launch grid=(256,1,1) block=(512,1,1) lds=16384
.amdgcn_target "amdgcn-amd-amdhsa--gfx950"
.text
.globl standalone__sliding_block_cached__decode_kernel
.p2align 8
.type standalone__sliding_block_cached__decode_kernel,@function
standalone__sliding_block_cached__decode_kernel:
"""

FOOTER = """
.section .rodata,"a"
.p2align 6
.amdhsa_kernel standalone__sliding_block_cached__decode_kernel
  .amdhsa_next_free_vgpr 256
  .amdhsa_next_free_sgpr 96
  .amdhsa_accum_offset 256
  .amdhsa_group_segment_fixed_size 0
  .amdhsa_kernarg_size 64
  .amdhsa_user_sgpr_count 2
  .amdhsa_user_sgpr_kernarg_segment_ptr 1
  .amdhsa_system_sgpr_workgroup_id_x 1
.end_amdhsa_kernel
"""


class G:
    def __init__(self):
        self.lines = []
        self.vm = 0

    def e(self, s):
        self.lines.append("    " + s)

    def c(self, s):
        self.lines.append("    ; " + s)

    def label(self, s):
        self.lines.append(s + ":")

    def vmem(self, s):
        self.e(s)
        self.vm += 1
        return self.vm - 1

    def wait_vm(self, idx):
        n = self.vm - idx - 1
        assert n <= 63
        self.e(f"s_waitcnt vmcnt({n})")

    def text(self):
        return "\n".join(self.lines) + "\n"


def r4(b):
    return f"v[{b}:{b+3}]"


def r2(b):
    return f"v[{b}:{b+1}]"


KV_FLAGS = ""
OPTS = {}

def gen(kv_flags="", w_flags=""):
    g = G()
    e = g.e
    S_X, S_K, S_V, S_WQ, S_WO, S_OUT, S_DBG, S_WS = 32, 36, 40, 44, 48, 52, 56, 60
    sH, sC, sW = 3, 4, 5
    sT0, sT1, sT2, sT3 = 6, 7, 8, 9
    sWQO = 70
    sG1, sG2, sG3 = 71, 72, 73
    sSCALE, sLOG2E = 74, 75
    sCNT = 76
    sEX = 78
    vTID = 0
    vLANE, vCH, vKG = 1, 2, 3
    vAX, vAWQ, vAK, vAV, vAWO, vALDS = 4, 5, 6, 7, 26, 27
    vACC = 8
    vX = 16
    vT = 28
    vWQ = 32
    vK = 112
    vV = 176
    vT2 = 240
    vQ = 32
    vS = 48
    vWO = 64
    vWOF = 80
    vH1 = 112
    vML = 144
    vFLAG = 160
    L_QRED, L_QBF, L_MRED, L_ORED, L_YRED = 0, 4096, 6144, 6400, 10752
    ORS = 528
    WS2 = 262144

    e("s_cmp_ge_u32 s2, 256")
    e("s_cbranch_scc1 L_end")
    e("s_load_dwordx16 s[16:31], s[0:1], 0")
    e(f"v_and_b32 v{vLANE}, 63, v0")
    e(f"v_lshrrev_b32 v{vT}, 6, v0")
    e(f"v_and_b32 v{vCH}, 15, v0")
    e(f"v_readfirstlane_b32 s{sW}, v{vT}")
    e(f"v_lshrrev_b32 v{vKG}, 4, v{vLANE}")
    e(f"s_and_b32 s{sH}, s2, 31")
    e(f"s_lshr_b32 s{sC}, s2, 5")
    e(f"s_movk_i32 s{sG1}, 0x1000")
    e(f"s_movk_i32 s{sG2}, 0x2000")
    e(f"s_movk_i32 s{sG3}, 0x3000")
    e(f"s_mov_b32 s{sSCALE}, 0x3db504f3")
    e(f"s_mov_b32 s{sLOG2E}, 0x3fb8aa3b")
    e(f"s_mov_b32 s{sWQO}, 0")
    e(f"v_mul_u32_u24 v{vT+1}, 80, v{vT}")
    e(f"v_mul_u32_u24 v{vT+2}, 20, v{vKG}")
    e(f"v_add_u32 v{vT+1}, v{vT+1}, v{vT+2}")
    e(f"v_lshlrev_b32 v{vAX}, 1, v{vT+1}")
    e(f"v_lshlrev_b32 v{vT+2}, 4, v{vCH}")
    e(f"v_lshl_add_u32 v{vAWQ}, v{vT+1}, 13, v{vT+2}")
    e(f"v_lshl_add_u32 v{vT+3}, v{vT}, 6, v{vCH}")
    e(f"v_lshlrev_b32 v{vT+3}, 8, v{vT+3}")
    e(f"v_lshl_add_u32 v{vAK}, v{vKG}, 4, v{vT+3}")
    e(f"v_lshl_add_u32 v{vT+3}, v{vT}, 14, v{vT+2}")
    e(f"v_lshl_add_u32 v{vAV}, v{vKG}, 10, v{vT+3}")
    e(f"v_lshlrev_b32 v{vT+3}, 4, v{vT}")
    e(f"v_lshl_add_u32 v{vT+3}, v{vKG}, 2, v{vT+3}")
    e(f"v_mul_u32_u24 v{vAWO}, 0x500, v{vT+3}")
    e(f"v_add_u32 v{vAWO}, v{vAWO}, v{vT+2}")
    e(f"v_lshlrev_b32 v{vALDS}, 9, v{vT}")
    e(f"v_lshl_add_u32 v{vALDS}, v{vCH}, 5, v{vALDS}")
    e(f"v_lshl_add_u32 v{vALDS}, v{vKG}, 3, v{vALDS}")
    e("s_waitcnt lgkmcnt(0)")
    def srd(base, lo, hi, size, off_s=None):
        if off_s is None:
            e(f"s_mov_b32 s{base}, s{lo}")
            e(f"s_and_b32 s{base+1}, s{hi}, 0xffff")
        else:
            e(f"s_add_u32 s{base}, s{lo}, s{off_s}")
            e(f"s_addc_u32 s{base+1}, s{hi}, 0")
            e(f"s_and_b32 s{base+1}, s{base+1}, 0xffff")
        if isinstance(size, str):
            e(f"s_mov_b32 s{base+2}, {size}")
        else:
            e(f"s_mov_b32 s{base+2}, {size:#x}")
        e(f"s_mov_b32 s{base+3}, 0x00020000")
    e(f"s_lshl_b32 s{sT0}, s{sH}, 22")
    e(f"s_lshl_b32 s{sT1}, s{sC}, 17")
    e(f"s_add_u32 s{sT0}, s{sT0}, s{sT1}")
    e(f"s_add_u32 s{sT0}, s{sT0}, 0x300000")
    srd(S_K, 18, 19, 131072, sT0)
    srd(S_V, 20, 21, 131072, sT0)
    srd(S_X, 16, 17, 1280)
    e(f"s_lshl_b32 s{sT1}, s{sH}, 8")
    e(f"s_sub_u32 s{sT2}, 0x500000, s{sT1}")
    srd(S_WQ, 22, 23, f"s{sT2}", sT1)
    srd(S_WS, 30, 31, 0x100000)
    srd(S_DBG, 28, 29, 256)
    e(f"s_mul_i32 s{sT1}, s{sH}, 0x28000")
    e(f"s_mul_i32 s{sT2}, s{sC}, 160")
    e(f"s_add_u32 s{sT1}, s{sT1}, s{sT2}")
    e(f"s_sub_u32 s{sT2}, 0x500000, s{sT1}")
    srd(S_WO, 24, 25, f"s{sT2}", sT1)
    srd(S_OUT, 26, 27, 1280)

    e(f"s_cmp_lg_u32 s{sW}, 0")
    e("s_cbranch_scc1 L_noclear")
    for i in range(4):
        e(f"v_mov_b32 v{vT2+i}, -1")
    e(f"s_lshl_b32 s{sT0}, s{sH}, 13")
    e(f"s_lshl_b32 s{sT1}, s{sC}, 10")
    e(f"s_add_u32 s{sT0}, s{sT0}, s{sT1}")
    e(f"v_lshlrev_b32 v{vT2+4}, 4, v{vLANE}")
    e(f"v_add_u32 v{vT2+4}, s{sT0}, v{vT2+4}")
    e(f"buffer_store_dwordx4 {r4(vT2)}, v{vT2+4}, s[{S_WS}:{S_WS+3}], 0 offen sc1")
    e(f"s_mul_i32 s{sT0}, s{sC}, 10240")
    e(f"s_lshl_b32 s{sT1}, s{sH}, 4")
    e(f"s_add_u32 s{sT0}, s{sT0}, s{sT1}")
    e(f"s_add_u32 s{sT0}, s{sT0}, {WS2:#x}")
    e(f"v_lshlrev_b32 v{vT2+5}, 9, v{vLANE}")
    e(f"v_add_u32 v{vT2+5}, s{sT0}, v{vT2+5}")
    e("s_mov_b32 exec_lo, 0xfffff"); e("s_mov_b32 exec_hi, 0")
    e(f"buffer_store_dwordx4 {r4(vT2)}, v{vT2+5}, s[{S_WS}:{S_WS+3}], 0 offen sc1")
    e(f"s_mov_b64 exec, -1")
    g.label("L_noclear")

    ix = []
    ix.append(g.vmem(f"buffer_load_dwordx4 {r4(vX)}, v{vAX}, s[{S_X}:{S_X+3}], 0 offen"))
    ix.append(g.vmem(f"buffer_load_dwordx4 {r4(vX+4)}, v{vAX}, s[{S_X}:{S_X+3}], 0 offen offset:16"))
    ix.append(g.vmem(f"buffer_load_dwordx2 {r2(vX+8)}, v{vAX}, s[{S_X}:{S_X+3}], 0 offen offset:32"))
    gs = ["0", f"s{sG1}", f"s{sG2}", f"s{sG3}"]
    iwq = []
    ik = {}
    for n in range(20):
        iwq.append(g.vmem(f"buffer_load_dwordx4 {r4(vWQ+4*n)}, v{vAWQ}, s[{S_WQ}:{S_WQ+3}], s{sWQO} offen{w_flags}"))
        e(f"s_add_u32 s{sWQO}, s{sWQO}, 0x2000")
        if n < 16:
            gg, i = n // 4, n % 4
            ik[(gg, i)] = g.vmem(f"buffer_load_dwordx4 {r4(vK+4*n)}, v{vAK}, s[{S_K}:{S_K+3}], {gs[gg]} offen offset:{i*64}{kv_flags}")
    iv = {}
    for gg in range(4):
        for r in range(4):
            iv[(gg, r)] = g.vmem(f"buffer_load_dwordx4 {r4(vV+16*gg+4*r)}, v{vAV}, s[{S_V}:{S_V+3}], {gs[gg]} offen offset:{r*256}{kv_flags}")
    e(f"s_cmp_lg_u32 s{sW}, 0")
    e("s_cbranch_scc1 L_noatomic")
    e(f"s_waitcnt vmcnt({g.vm})")
    e(f"v_mov_b32 v{vT2+6}, 1")
    e(f"v_mov_b32 v{vT2+7}, 0")
    e("s_mov_b64 exec, 1")
    e(f"buffer_atomic_add v{vT2+6}, v{vT2+7}, s[{S_DBG}:{S_DBG+3}], 0 offen sc1")
    e("s_mov_b64 exec, -1")
    g.label("L_noatomic")

    for j in range(8):
        e(f"v_mov_b32 v{vACC+j}, 0")
    for n in range(20):
        g.wait_vm(iwq[n])
        xr = vX + n // 2
        if n % 2 == 0:
            e(f"v_lshlrev_b32 v{vT}, 16, v{xr}")
        else:
            e(f"v_and_b32 v{vT}, 0xffff0000, v{xr}")
        for d in range(4):
            w = vWQ + 4 * n + d
            e(f"v_lshlrev_b32 v{vT+1}, 16, v{w}")
            e(f"v_and_b32 v{vT+2}, 0xffff0000, v{w}")
            e(f"v_fmac_f32 v{vACC+2*d}, v{vT+1}, v{vT}")
            e(f"v_fmac_f32 v{vACC+2*d+1}, v{vT+2}, v{vT}")

    def treduce():
        e("s_nop 1")
        for j in range(4):
            e(f"v_permlane32_swap_b32 v{vACC+j}, v{vACC+j+4}")
        for j in range(4):
            e(f"v_add_f32 v{vACC+j}, v{vACC+j}, v{vACC+j+4}")
        e("s_nop 1")
        for j in range(2):
            e(f"v_permlane16_swap_b32 v{vACC+j}, v{vACC+j+2}")
        for j in range(2):
            e(f"v_add_f32 v{vACC+j}, v{vACC+j}, v{vACC+j+2}")

    treduce()
    e(f"ds_write_b64 v{vALDS}, {r2(vACC)} offset:{L_QRED}")
    e("s_mov_b32 exec_lo, 0x03ff03ff"); e("s_mov_b32 exec_hi, 0x03ff03ff")
    iwo = []
    for k in range(4):
        iwo.append(g.vmem(f"buffer_load_dwordx4 {r4(vWO+4*k)}, v{vAWO}, s[{S_WO}:{S_WO+3}], 0 offen offset:{k*1280}{w_flags}"))
    e("s_mov_b64 exec, -1")
    e(f"v_mov_b32 v{vT2+7}, 0")
    iflag = g.vmem(f"buffer_load_dword v255, v{vT2+7}, s[{S_DBG}:{S_DBG+3}], 0 offen sc1")
    vFL = 255
    e("s_waitcnt lgkmcnt(0)")
    e("s_barrier")
    e(f"v_lshlrev_b32 v{vT}, 3, v{vLANE}")
    for w in range(8):
        e(f"ds_read_b64 {r2(vS+2*w)}, v{vT} offset:{L_QRED+512*w}")
    e("s_waitcnt lgkmcnt(0)")
    for w in range(1, 8):
        e(f"v_add_f32 v{vS}, v{vS}, v{vS+2*w}")
        e(f"v_add_f32 v{vS+1}, v{vS+1}, v{vS+2*w+1}")
    e(f"v_cvt_pk_bf16_f32 v{vS}, v{vS}, v{vS+1}")
    e(f"s_lshl_b32 s{sT0}, s{sW}, 8")
    e(f"v_lshlrev_b32 v{vT}, 2, v{vLANE}")
    e(f"v_add_u32 v{vT}, s{sT0}, v{vT}")
    e(f"ds_write_b32 v{vT}, v{vS} offset:{L_QBF}")
    e(f"v_lshlrev_b32 v{vT+1}, 4, v{vKG}")
    e(f"v_add_u32 v{vT+1}, s{sT0}, v{vT+1}")
    e("s_waitcnt lgkmcnt(0)")
    for i in range(4):
        e(f"ds_read_b128 {r4(vQ+4*i)}, v{vT+1} offset:{L_QBF+64*i}")
    e("s_waitcnt lgkmcnt(0)")
    g.wait_vm(ik[(3, 3)])
    for gg in range(4):
        for i in range(4):
            cc = "0" if i == 0 else r4(vS + 4 * gg)
            e(f"v_mfma_f32_16x16x32_bf16 {r4(vS+4*gg)}, {r4(vK+16*gg+4*i)}, {r4(vQ+4*i)}, {cc}")
    e("s_nop 7")
    e("s_nop 1")
    for j in range(8):
        e(f"v_cvt_pk_bf16_f32 v{vT2+j}, v{vS+2*j}, v{vS+2*j+1}")
    for j in range(8):
        e(f"v_lshlrev_b32 v{vS+2*j}, 16, v{vT2+j}")
        e(f"v_and_b32 v{vS+2*j+1}, 0xffff0000, v{vT2+j}")
    for j in range(16):
        e(f"v_mul_f32 v{vS+j}, s{sSCALE}, v{vS+j}")
    for j in range(8):
        e(f"v_cvt_pk_bf16_f32 v{vT2+j}, v{vS+2*j}, v{vS+2*j+1}")
    for j in range(8):
        e(f"v_lshlrev_b32 v{vS+2*j}, 16, v{vT2+j}")
        e(f"v_and_b32 v{vS+2*j+1}, 0xffff0000, v{vT2+j}")
    e(f"v_max3_f32 v{vT}, v{vS}, v{vS+1}, v{vS+2}")
    for j in range(3, 15, 2):
        e(f"v_max3_f32 v{vT}, v{vT}, v{vS+j}, v{vS+j+1}")
    e(f"v_max_f32 v{vT}, v{vT}, v{vS+15}")
    e(f"v_mov_b32 v{vT+1}, v{vT}")
    e("s_nop 1")
    e(f"v_permlane32_swap_b32 v{vT}, v{vT+1}")
    e(f"v_max_f32 v{vT}, v{vT}, v{vT+1}")
    e(f"v_mov_b32 v{vT+1}, v{vT}")
    e("s_nop 1")
    e(f"v_permlane16_swap_b32 v{vT}, v{vT+1}")
    e(f"v_max_f32 v{vT}, v{vT}, v{vT+1}")
    e(f"s_lshl_b32 s{sT0}, s{sW}, 2")
    e(f"v_mov_b32 v{vT+1}, s{sT0}")
    e(f"ds_write_b32 v{vT+1}, v{vT} offset:{L_MRED}")
    e("s_waitcnt lgkmcnt(0)")
    e("s_barrier")
    e(f"v_mov_b32 v{vT+1}, 0")
    e(f"ds_read_b128 {r4(vT2)}, v{vT+1} offset:{L_MRED}")
    e(f"ds_read_b128 {r4(vT2+4)}, v{vT+1} offset:{L_MRED+16}")
    e("s_waitcnt lgkmcnt(0)")
    e(f"v_max3_f32 v{vT}, v{vT2}, v{vT2+1}, v{vT2+2}")
    e(f"v_max3_f32 v{vT}, v{vT}, v{vT2+3}, v{vT2+4}")
    e(f"v_max3_f32 v{vT}, v{vT}, v{vT2+5}, v{vT2+6}")
    e(f"v_max_f32 v{vT}, v{vT}, v{vT2+7}")
    vM = vT2 + 8
    e(f"v_mov_b32 v{vM}, v{vT}")
    e(f"v_mul_f32 v{vT+1}, s{sLOG2E}, v{vT}")
    for j in range(16):
        e(f"v_fma_f32 v{vS+j}, v{vS+j}, s{sLOG2E}, -v{vT+1}")
    for j in range(16):
        e(f"v_exp_f32 v{vS+j}, v{vS+j}")
    e("s_nop 0")
    vL = vT2 + 10
    e(f"v_add_f32 v{vL}, v{vS}, v{vS+1}")
    for j in range(2, 16):
        e(f"v_add_f32 v{vL}, v{vL}, v{vS+j}")
    e(f"v_mov_b32 v{vT+1}, v{vL}")
    e("s_nop 1")
    e(f"v_permlane32_swap_b32 v{vL}, v{vT+1}")
    e(f"v_add_f32 v{vL}, v{vL}, v{vT+1}")
    e(f"v_mov_b32 v{vT+1}, v{vL}")
    e("s_nop 1")
    e(f"v_permlane16_swap_b32 v{vL}, v{vT+1}")
    e(f"v_add_f32 v{vL}, v{vL}, v{vT+1}")
    e(f"s_cmp_eq_u32 s{sW}, 0")
    e(f"s_cselect_b32 s{sT1}, 1.0, 0")
    e(f"v_mul_f32 v{vL+1}, s{sT1}, v{vM}")
    e(f"s_mul_i32 s{sT0}, s{sW}, {ORS}")
    e(f"v_mov_b32 v{vT+1}, s{sT0}")
    e(f"ds_write_b64 v{vT+1}, {r2(vL)} offset:{L_ORED+512}")
    for j in range(8):
        e(f"v_mov_b32 v{vACC+j}, 0")
    for gg in range(4):
        for r in range(4):
            g.wait_vm(iv[(gg, r)])
            p = vS + 4 * gg + r
            for d in range(4):
                w = vV + 16 * gg + 4 * r + d
                e(f"v_lshlrev_b32 v{vT+1}, 16, v{w}")
                e(f"v_and_b32 v{vT+2}, 0xffff0000, v{w}")
                e(f"v_fmac_f32 v{vACC+2*d}, v{vT+1}, v{p}")
                e(f"v_fmac_f32 v{vACC+2*d+1}, v{vT+2}, v{p}")
    treduce()
    e(f"s_lshl_b32 s{sT0}, s{sW}, 4")
    e(f"v_add_u32 v{vT}, s{sT0}, v{vALDS}")
    e(f"ds_write_b64 v{vT}, {r2(vACC)} offset:{L_ORED}")
    e("s_waitcnt lgkmcnt(0)")
    e("s_barrier")
    e(f"s_cmp_lg_u32 s{sW}, 0")
    e("s_cbranch_scc1 L_nopub1")
    e("s_mov_b32 exec_lo, -1"); e("s_mov_b32 exec_hi, 1")
    e(f"v_lshlrev_b32 v{vT}, 4, v{vLANE}")
    for w in range(8):
        e(f"ds_read_b128 {r4(vH1+4*w)}, v{vT} offset:{L_ORED+ORS*w}")
    e("s_waitcnt lgkmcnt(0)")
    for w in range(1, 8):
        for d in range(4):
            e(f"v_add_f32 v{vH1+d}, v{vH1+d}, v{vH1+4*w+d}")
    for d in range(4):
        e(f"v_min_u32 v{vH1+d}, 0xfffffffe, v{vH1+d}")
    e(f"s_lshl_b32 s{sT0}, s{sH}, 13")
    e(f"s_lshl_b32 s{sT1}, s{sC}, 10")
    e(f"s_add_u32 s{sT0}, s{sT0}, s{sT1}")
    e(f"v_add_u32 v{vT}, s{sT0}, v{vT}")
    e(f"buffer_store_dwordx4 {r4(vH1)}, v{vT}, s[{S_WS}:{S_WS+3}], 0 offen sc1")
    e("s_mov_b64 exec, -1")
    e("s_nop 1")
    g.label("L_nopub1")
    e("s_waitcnt vmcnt(0)")
    for k in range(4):
        for d in range(4):
            w = vWO + 4 * k + d
            e(f"v_lshlrev_b32 v{vWOF+8*k+2*d}, 16, v{w}")
            e(f"v_and_b32 v{vWOF+8*k+2*d+1}, 0xffff0000, v{w}")
    e(f"s_mov_b32 s{sCNT}, 0")
    g.label("L_flagchk")
    e(f"v_cmp_ne_u32 vcc, 0x100, v{vFL}")
    e("s_nop 1")
    e("s_cbranch_vccz L_flagok")
    e(f"s_add_u32 s{sCNT}, s{sCNT}, 1")
    e(f"s_cmp_gt_u32 s{sCNT}, 0x40000")
    e("s_cbranch_scc1 L_flagok")
    e(f"v_mov_b32 v{vT}, 0")
    e(f"buffer_load_dword v{vFL}, v{vT}, s[{S_DBG}:{S_DBG+3}], 0 offen sc1")
    e("s_waitcnt vmcnt(0)")
    e("s_branch L_flagchk")
    g.label("L_flagok")
    e(f"s_lshl_b32 s{sT0}, s{sH}, 13")
    e(f"s_lshl_b32 s{sT1}, s{sW}, 6")
    e(f"s_add_u32 s{sT1}, s{sT1}, s{sT0}")
    e(f"v_lshlrev_b32 v{vT}, 4, v{vKG}")
    e(f"v_add_u32 v{vT}, s{sT1}, v{vT}")
    e(f"s_add_u32 s{sT0}, s{sT0}, 512")
    e(f"v_mov_b32 v{vT+1}, s{sT0}")
    e(f"s_mov_b32 s{sCNT}, 0")
    g.label("L_poll1")
    for cp in range(8):
        so = "0" if cp < 4 else f"s{sG1}"
        e(f"buffer_load_dwordx4 {r4(vH1+4*cp)}, v{vT}, s[{S_WS}:{S_WS+3}], {so} offen offset:{(cp%4)*1024} sc1")
    for cp in range(8):
        so = "0" if cp < 4 else f"s{sG1}"
        e(f"buffer_load_dwordx2 {r2(vML+2*cp)}, v{vT+1}, s[{S_WS}:{S_WS+3}], {so} offen offset:{(cp%4)*1024} sc1")
    e("s_waitcnt vmcnt(0)")
    e(f"v_max3_u32 v{vT+2}, v{vH1}, v{vH1+1}, v{vH1+2}")
    for j in range(3, 47, 2):
        e(f"v_max3_u32 v{vT+2}, v{vT+2}, v{vH1+j}, v{vH1+j+1}")
    e(f"v_max_u32 v{vT+2}, v{vT+2}, v{vH1+47}")
    e(f"v_cmp_eq_u32 vcc, -1, v{vT+2}")
    e("s_nop 1")
    e("s_cbranch_vccz L_poll1ok")
    e(f"s_add_u32 s{sCNT}, s{sCNT}, 1")
    e(f"s_cmp_gt_u32 s{sCNT}, 0x40000")
    e("s_cbranch_scc0 L_poll1")
    g.label("L_poll1ok")
    e(f"v_max3_f32 v{vT}, v{vML+1}, v{vML+3}, v{vML+5}")
    e(f"v_max3_f32 v{vT}, v{vT}, v{vML+7}, v{vML+9}")
    e(f"v_max3_f32 v{vT}, v{vT}, v{vML+11}, v{vML+13}")
    e(f"v_max_f32 v{vT}, v{vT}, v{vML+15}")
    for cp in range(8):
        e(f"v_sub_f32 v{vML+2*cp+1}, v{vML+2*cp+1}, v{vT}")
    for cp in range(8):
        e(f"v_mul_f32 v{vML+2*cp+1}, s{sLOG2E}, v{vML+2*cp+1}")
    for cp in range(8):
        e(f"v_exp_f32 v{vML+2*cp+1}, v{vML+2*cp+1}")
    e("s_nop 0")
    e(f"v_mul_f32 v{vT}, v{vML}, v{vML+1}")
    for cp in range(1, 8):
        e(f"v_fmac_f32 v{vT}, v{vML+2*cp}, v{vML+2*cp+1}")
    e(f"v_rcp_f32 v{vT}, v{vT}")
    for d in range(4):
        e(f"v_mul_f32 v{vT2+d}, v{vH1+d}, v{vML+1}")
    for cp in range(1, 8):
        for d in range(4):
            e(f"v_fmac_f32 v{vT2+d}, v{vH1+4*cp+d}, v{vML+2*cp+1}")
    for d in range(4):
        e(f"v_mul_f32 v{vT2+d}, v{vT2+d}, v{vT}")
    e(f"v_cvt_pk_bf16_f32 v{vT2+4}, v{vT2}, v{vT2+1}")
    e(f"v_cvt_pk_bf16_f32 v{vT2+5}, v{vT2+2}, v{vT2+3}")
    e(f"v_lshlrev_b32 v{vT2}, 16, v{vT2+4}")
    e(f"v_and_b32 v{vT2+1}, 0xffff0000, v{vT2+4}")
    e(f"v_lshlrev_b32 v{vT2+2}, 16, v{vT2+5}")
    e(f"v_and_b32 v{vT2+3}, 0xffff0000, v{vT2+5}")
    for j in range(8):
        e(f"v_mul_f32 v{vACC+j}, v{vWOF+j}, v{vT2}")
    for k in range(1, 4):
        for j in range(8):
            e(f"v_fmac_f32 v{vACC+j}, v{vWOF+8*k+j}, v{vT2+k}")
    treduce()
    e(f"ds_write_b64 v{vALDS}, {r2(vACC)} offset:{L_YRED}")
    e("s_waitcnt lgkmcnt(0)")
    e("s_barrier")
    e(f"s_cmp_eq_u32 s{sW}, 1")
    e("s_cbranch_scc1 L_cons2")
    e(f"s_cmp_lg_u32 s{sW}, 0")
    e("s_cbranch_scc1 L_end")
    e("s_mov_b32 exec_lo, 0xfffff"); e("s_mov_b32 exec_hi, 0")
    e(f"v_lshlrev_b32 v{vT}, 4, v{vLANE}")
    for w in range(8):
        e(f"ds_read_b128 {r4(vH1+4*w)}, v{vT} offset:{L_YRED+512*w}")
    e("s_waitcnt lgkmcnt(0)")
    for w in range(1, 8):
        for d in range(4):
            e(f"v_add_f32 v{vH1+d}, v{vH1+d}, v{vH1+4*w+d}")
    for d in range(4):
        e(f"v_min_u32 v{vH1+d}, 0xfffffffe, v{vH1+d}")
    e(f"s_mul_i32 s{sT0}, s{sC}, 10240")
    e(f"s_lshl_b32 s{sT1}, s{sH}, 4")
    e(f"s_add_u32 s{sT0}, s{sT0}, s{sT1}")
    e(f"s_add_u32 s{sT0}, s{sT0}, {WS2:#x}")
    e(f"v_lshlrev_b32 v{vT}, 9, v{vLANE}")
    e(f"v_add_u32 v{vT}, s{sT0}, v{vT}")
    e(f"buffer_store_dwordx4 {r4(vH1)}, v{vT}, s[{S_WS}:{S_WS+3}], 0 offen sc1")
    e("s_branch L_end")
    g.label("L_cons2")
    e(f"s_cmp_ge_u32 s{sH}, 20")
    e("s_cbranch_scc1 L_end")
    e("s_mov_b32 exec_lo, -1"); e("s_mov_b32 exec_hi, 0")
    e(f"s_mul_i32 s{sT0}, s{sC}, 20")
    e(f"s_add_u32 s{sT0}, s{sT0}, s{sH}")
    e(f"s_lshl_b32 s{sT0}, s{sT0}, 9")
    e(f"s_add_u32 s{sT0}, s{sT0}, {WS2:#x}")
    e(f"v_lshlrev_b32 v{vT}, 4, v{vLANE}")
    e(f"v_add_u32 v{vT}, s{sT0}, v{vT}")
    e(f"s_mov_b32 s{sCNT}, 0")
    g.label("L_poll2")
    e(f"buffer_load_dwordx4 {r4(vH1)}, v{vT}, s[{S_WS}:{S_WS+3}], 0 offen sc1")
    e("s_waitcnt vmcnt(0)")
    e(f"v_max3_u32 v{vT+2}, v{vH1}, v{vH1+1}, v{vH1+2}")
    e(f"v_max_u32 v{vT+2}, v{vT+2}, v{vH1+3}")
    e(f"v_cmp_eq_u32 vcc, -1, v{vT+2}")
    e("s_nop 1")
    e("s_cbranch_vccz L_poll2ok")
    e(f"s_add_u32 s{sCNT}, s{sCNT}, 1")
    e(f"s_cmp_gt_u32 s{sCNT}, 0x40000")
    e("s_cbranch_scc0 L_poll2")
    g.label("L_poll2ok")
    for sh in (1, 2, 4, 8):
        for d in range(4):
            e(f"v_add_f32_dpp v{vH1+d}, v{vH1+d}, v{vH1+d} row_shr:{sh} row_mask:0xf bank_mask:0xf bound_ctrl:0")
    for d in range(4):
        e(f"v_add_f32_dpp v{vH1+d}, v{vH1+d}, v{vH1+d} row_bcast:15 row_mask:0xa bank_mask:0xf")
    e(f"v_cvt_pk_bf16_f32 v{vH1+4}, v{vH1}, v{vH1+1}")
    e(f"v_cvt_pk_bf16_f32 v{vH1+5}, v{vH1+2}, v{vH1+3}")
    e(f"s_mul_i32 s{sT0}, s{sC}, 160")
    e(f"s_lshl_b32 s{sT1}, s{sH}, 3")
    e(f"s_add_u32 s{sT0}, s{sT0}, s{sT1}")
    e(f"v_mov_b32 v{vT}, s{sT0}")
    e("s_mov_b32 exec_lo, 0x80000000"); e("s_mov_b32 exec_hi, 0")
    e(f"buffer_store_dwordx2 {r2(vH1+4)}, v{vT}, s[{S_OUT}:{S_OUT+3}], 0 offen")
    g.label("L_end")
    e("s_endpgm")
    return HEADER + g.text() + FOOTER


if __name__ == "__main__":
    out = sys.argv[1] if len(sys.argv) > 1 else "standalone__sliding_block_cached__decode.s"
    kv = sys.argv[2] if len(sys.argv) > 2 else ""
    open(out, "w").write(gen(kv_flags=kv))
```
